```python
import torch

def _softmax(x, axis=-1):
    return torch.softmax(x, dim=axis)

def _gelu(x):
    return torch.nn.functional.gelu(x, approximate='tanh')

def _silu(x):
    return torch.nn.functional.silu(x)

def _sigmoid(x):
    return torch.sigmoid(x)

def _layernorm(x, axis=-1, eps=1e-05):
    m = x.mean(dim=axis, keepdim=True)
    v = x.var(dim=axis, keepdim=True, unbiased=False)
    return (x - m) / torch.sqrt(v + eps)

def _scatter_add(tgt, idx, src, axis=0):
    return tgt.clone().index_add_(axis, idx, src)

def _segment_sum(src, seg, n):
    out = torch.zeros((n,) + src.shape[1:], dtype=src.dtype)
    return out.index_add_(0, seg, src)

def _pad(x, pw):
    flat = tuple((v for pair in reversed(pw) for v in pair))
    return torch.nn.functional.pad(x, flat)
kernel_name = 'adaLN_cond__ssm_conv_s4__glu_gated_swiglu__prompt'

def setup_inputs():

    _w = lambda a: (lambda t: t.to(torch.bfloat16) if t.is_floating_point() else t)(torch.as_tensor(a))

    def _A_setup():
        B, L, D, N = (1, 2048, 640, 128)
        A_re = -(lambda _x: torch.exp(torch.as_tensor(_x)))((lambda *s: torch.randn(*s, dtype=torch.bfloat16) * 3.2)(D, N))
        A_im = torch.pi * (lambda *s: torch.randn(*s, dtype=torch.bfloat16) * 0.05)(D, N)
        B_re = (lambda *s: torch.randn(*s, dtype=torch.bfloat16) * 0.1)(D, N)
        B_im = (lambda *s: torch.randn(*s, dtype=torch.bfloat16) * 0.1)(D, N)
        C_re = (lambda *s: torch.randn(*s, dtype=torch.bfloat16) * 0.1)(D, N)
        C_im = (lambda *s: torch.randn(*s, dtype=torch.bfloat16) * 0.1)(D, N)
        log_dt = (lambda *s: torch.randn(*s, dtype=torch.bfloat16) * 0.05)(D) * 0.5 - 4.0
        Dskip = (lambda *s: torch.randn(*s, dtype=torch.bfloat16) * 0.05)(D)
        return {'u': _w((lambda *s: torch.randn(*s, dtype=torch.bfloat16) * 0.05)(B, L, D)), 'A_re': _w(A_re), 'A_im': _w(A_im), 'B_re': _w(B_re), 'B_im': _w(B_im), 'C_re': _w(C_re), 'C_im': _w(C_im), 'log_dt': _w(log_dt), 'Dskip': _w(Dskip)}
    _A_in = _A_setup()

    def _B_setup():
        B, S, D, F = (1, 2048, 640, 1728)
        return {'x': _w((lambda *s: torch.randn(*s, dtype=torch.bfloat16) * 0.05)(B, S, D)), 'w1': _w((lambda *s: torch.randn(*s, dtype=torch.bfloat16) * 0.4)(D, F) * (2.0 / D) ** 0.5), 'w3': _w((lambda *s: torch.randn(*s, dtype=torch.bfloat16) * 0.4)(D, F) * (2.0 / D) ** 0.5), 'w2': _w((lambda *s: torch.randn(*s, dtype=torch.bfloat16) * 0.4)(F, D) * (2.0 / F) ** 0.5)}
    _B_in = _B_setup()
    return {'A_u': _A_in['u'], 'A_A_re': _A_in['A_re'], 'A_A_im': _A_in['A_im'], 'A_B_re': _A_in['B_re'], 'A_B_im': _A_in['B_im'], 'A_C_re': _A_in['C_re'], 'A_C_im': _A_in['C_im'], 'A_log_dt': _A_in['log_dt'], 'A_Dskip': _A_in['Dskip'], 'B_x': _B_in['x'], 'B_w1': _B_in['w1'], 'B_w3': _B_in['w3'], 'B_w2': _B_in['w2'], 'c': _w((lambda *s: torch.randn(*s, dtype=torch.bfloat16) * 0.2)(1, 640) * 8.0), 'w_mod': _w((lambda *s: torch.randn(*s, dtype=torch.bfloat16) * 0.2)(640, 6 * 640) * 640 ** (-0.5) * 8.0)}

def reference(A_u, A_A_re, A_A_im, A_B_re, A_B_im, A_C_re, A_C_im, A_log_dt, A_Dskip, B_x, B_w1, B_w3, B_w2, c, w_mod):

    def _A_ref(u, A_re, A_im, B_re, B_im, C_re, C_im, log_dt, Dskip):
        Bsz, L, D = u.shape
        dt = torch.exp(log_dt)[:, None]
        A = A_re + 1j * A_im
        Bc = B_re + 1j * B_im
        Cc = C_re + 1j * C_im
        logdA = dt * A
        dB = dt * Bc
        l = (lambda x, dt: x.to(dt))(torch.arange(L), A_re.dtype)
        P = torch.exp(logdA[:, :, None] * l[None, None, :])
        K = torch.einsum('dn,dnl,dn->dl', Cc, P, dB).real
        L2 = 2 * L
        Kp = _pad(K, ((0, 0), (0, L)))
        up = (lambda x, *d: x.permute(*d))(u, 0, 2, 1)
        up = _pad(up, ((0, 0), (0, 0), (0, L)))
        Kf = (lambda x, axes=(-2, -1): torch.fft.rfft2(x.float(), dim=axes))(Kp[:, None, :], axes=(-2, -1))
        Uf = (lambda x, axes=(-2, -1): torch.fft.rfft2(x.float(), dim=axes))(up[:, :, None, :], axes=(-2, -1))
        Yf = Uf * Kf[None, :, :, :]
        y = (lambda x, s, axes=(-2, -1): torch.fft.irfft2(x, s=s, dim=axes).to(torch.bfloat16))(Yf, (1, L2), axes=(-2, -1))[:, :, 0, :L]
        y = (lambda x, *d: x.permute(*d))(y, 0, 2, 1) + u * Dskip[None, None, :]
        return y

    def _B_ref(x, w1, w3, w2):
        gate = torch.einsum('bsd,df->bsf', x, w1)
        up = torch.einsum('bsd,df->bsf', x, w3)
        h = _silu(gate) * up
        out = torch.einsum('bsf,fd->bsd', h, w2)
        return out
    x = A_u
    mod = (_silu(c) @ w_mod).reshape(c.shape[0], 6, 1, -1)
    sa, ca, ga, sb, cb, gb = (mod[:, 0].clone(), mod[:, 1].clone(), mod[:, 2].clone(), mod[:, 3].clone(), mod[:, 4].clone(), mod[:, 5].clone())
    h = _layernorm(x, axis=-1) * (1 + ca) + sa
    x = x + ga * _A_ref(h, A_A_re, A_A_im, A_B_re, A_B_im, A_C_re, A_C_im, A_log_dt, A_Dskip)
    h = _layernorm(x, axis=-1) * (1 + cb) + sb
    x = x + gb * _B_ref(h, B_w1, B_w3, B_w2)
    return x
```

```python
def emit(e, lab, srd, rbf, C, kernels):
    kernels.append(('k2_kernel', 640, 192, 43520, 96, 64))
    S = 4160; HB = 33280 + 5120
    lab('k2_kernel')
    e('s_cmp_lt_u32 s2, 640'); e('s_cbranch_scc1 K2_GO'); e('s_endpgm'); lab('K2_GO')
    e('s_load_dwordx2 s[8:9], s[0:1], 136'); e('s_waitcnt lgkmcnt(0)'); srd(20, 8, C['WSZ'])
    e(f's_mul_i32 s24, s2, {C["KREV_STRIDE"]}'); e(f's_add_u32 s24, s24, {C["WS_KREV"]}')
    e('s_mul_i32 s25, s2, 4224'); e(f's_add_u32 s25, s25, {C["WS_XT"]}')
    e('s_lshl_b32 s26, s2, 2')
    e('v_mov_b32 v1, s26')
    e('buffer_load_dword v2, v1, s[20:23], 0 offen')
    e('buffer_load_dword v3, v1, s[20:23], 0 offen offset:2560')
    for r in range(4): e(f'v_mov_b32 v{8+r}, 0')
    e('v_lshlrev_b32 v4, 4, v0')
    e(f'ds_write_b128 v4, v[8:11] offset:33280')
    e('v_cmp_gt_u32 vcc, 128, v0'); e('s_and_saveexec_b64 s[28:29], vcc'); e(f'ds_write_b128 v4, v[8:11] offset:{33280+3072}'); e('s_mov_b64 exec, s[28:29]')
    for it in range(2):
        e(f'v_add_u32 v5, {192*it}, v0'); e('v_lshlrev_b32 v6, 4, v5')
        lim = 260 if it else None
        if it: e('v_cmp_gt_u32 vcc, 260, v5'); e('s_and_saveexec_b64 s[28:29], vcc')
        e('buffer_load_dwordx4 v[16:19], v6, s[20:23], s24 offen'); e('buffer_load_dwordx4 v[20:23], v6, s[20:23], s24 offen offset:16')
        e('s_waitcnt vmcnt(0)')
        for c in range(8):
            for q in range(4):
                if c % 2 == 0: e(f'v_mov_b32 v{24+q}, v{16+q+c//2}')
                else: e(f'v_alignbit_b32 v{24+q}, v{16+q+(c+1)//2}, v{16+q+(c-1)//2}, 16')
            e(f'ds_write_b128 v6, v[24:27] offset:{S*c}')
        if it: e('s_mov_b64 exec, s[28:29]')
        if it: e('v_cmp_gt_u32 vcc, 256, v5'); e('s_and_saveexec_b64 s[28:29], vcc')
        e('buffer_load_dwordx4 v[16:19], v6, s[20:23], s25 offen')
        e('v_lshlrev_b32 v7, 5, v5'); e(f's_mov_b32 s30, {C["WS_ST1"]}'); e(f's_mov_b32 s31, {C["WS_ST1"]+8192}')
        e('buffer_load_dwordx4 v[32:35], v7, s[20:23], s30 offen'); e('buffer_load_dwordx4 v[36:39], v7, s[20:23], s30 offen offset:16')
        e('buffer_load_dwordx4 v[40:43], v7, s[20:23], s31 offen'); e('buffer_load_dwordx4 v[44:47], v7, s[20:23], s31 offen offset:16')
        e('s_waitcnt vmcnt(0)')
        if it == 0: e('v_add_f32 v3, 1.0, v3'); rbf('v3', 'v3')
        for q in range(8):
            src = f'v{16+q//2}'
            e(f'v_lshlrev_b32 v48, 16, {src}' if q % 2 == 0 else f'v_and_b32 v48, 0xffff0000, {src}')
            e(f'v_sub_f32 v48, v48, v{32+q}'); rbf('v48', 'v48')
            e(f'v_rcp_f32 v49, v{40+q}'); e('s_nop 0'); e('v_mul_f32 v48, v48, v49'); rbf('v48', 'v48')
            e('v_mul_f32 v48, v48, v3'); rbf('v48', 'v48'); e('v_add_f32 v48, v48, v2')
            e(f'v_cvt_pk_bf16_f32 v{50+q}, v48, v48')
        for q in range(4): e(f'v_and_b32 v{50+2*q}, 0xffff, v{50+2*q}'); e(f'v_lshl_or_b32 v{24+q}, v{51+2*q}, 16, v{50+2*q}')
        e('v_lshrrev_b32 v7, 2, v5'); e('s_movk_i32 s30, 80'); e('v_mul_lo_u32 v7, v7, s30'); e('v_and_b32 v60, 3, v5'); e('v_lshl_add_u32 v7, v60, 4, v7')
        e(f'ds_write_b128 v7, v[24:27] offset:{HB}')
        if it: e('s_mov_b64 exec, s[28:29]')
    e('s_waitcnt lgkmcnt(0)'); e('s_barrier')
    e('v_lshrrev_b32 v4, 6, v0'); e('s_nop 1'); e('v_readfirstlane_b32 s32, v4'); e('s_nop 3')
    e('s_cmp_eq_u32 s32, 0'); e('s_cselect_b32 s33, 0, 1')
    e('s_cmp_eq_u32 s32, 2'); e('s_cselect_b32 s34, 32, 0')
    e('v_and_b32 v5, 31, v0'); e('v_bfe_u32 v6, v0, 5, 1')
    e('v_and_b32 v7, 7, v5'); e('v_sub_u32 v7, 7, v7'); e(f's_movk_i32 s35, {S}'); e('v_mul_lo_u32 v7, v7, s35')
    e('v_lshrrev_b32 v8, 3, v5'); e('v_lshlrev_b32 v8, 4, v8'); e('v_lshl_add_u32 v7, v6, 4, v7'); e('v_sub_u32 v7, v7, v8')
    e('s_add_u32 s36, s34, 31'); e('s_lshl_b32 s36, s36, 6'); e('s_sub_u32 s36, 4080, s36'); e('v_add_u32 v7, s36, v7')
    e('s_lshl_b32 s37, s33, 5'); e('s_sub_u32 s37, s37, s34'); e('s_sub_u32 s37, s37, 31'); e('v_add_u32 v8, s37, v5')
    e('s_movk_i32 s35, 80'); e('v_mul_i32_i24 v8, s35, v8'); e('v_lshl_add_u32 v8, v6, 4, v8'); e(f'v_add_u32 v8, {HB}, v8')
    for r in range(16): e(f'v_mov_b32 v{64+r}, 0')
    n = 0
    for kk in range(32):
        for s in range(2):
            p = 16 + 8*(n & 3); n += 1
            e(f'ds_read_b128 v[{p}:{p+3}], v7 offset:{64*(31-kk)+32*s}'); e(f'ds_read_b128 v[{p+4}:{p+7}], v8 offset:{80*(31-kk)+32*s}')
            if n > 2:
                q = 16 + 8*((n-3) & 3)
                e('s_waitcnt lgkmcnt(4)'); e(f'v_mfma_f32_32x32x16_bf16 v[64:79], v[{q}:{q+3}], v[{q+4}:{q+7}], v[64:79]')
    for m in (2, 1):
        q = 16 + 8*((n-m) & 3)
        e(f's_waitcnt lgkmcnt({2*(m-1)})'); e(f'v_mfma_f32_32x32x16_bf16 v[64:79], v[{q}:{q+3}], v[{q+4}:{q+7}], v[64:79]')
    e('s_nop 15'); e('s_barrier')
    e('v_and_b32 v9, 63, v0'); e('v_lshlrev_b32 v9, 2, v9')
    e('s_cmp_eq_u32 s32, 2'); e('s_cbranch_scc0 K2_NW')
    for r in range(16): e(f'ds_write_b32 v9, v{64+r} offset:{256*r}')
    e('s_waitcnt lgkmcnt(0)')
    lab('K2_NW'); e('s_barrier')
    e('s_cmp_eq_u32 s32, 2'); e('s_cbranch_scc1 K2_END')
    e('s_cmp_eq_u32 s32, 1'); e('s_cbranch_scc0 K2_ST')
    for r in range(16): e(f'ds_read_b32 v{16+r}, v9 offset:{256*r}')
    e('s_waitcnt lgkmcnt(0)')
    for r in range(16): e(f'v_add_f32 v{64+r}, v{64+r}, v{16+r}')
    lab('K2_ST')
    e('v_add_u32 v10, s37, v5'); e('s_add_u32 s38, s34, 31')
    e('v_add_u32 v10, s38, v10'); e('v_lshlrev_b32 v10, 6, v10'); e('v_lshl_add_u32 v10, v6, 3, v10')
    e('s_mul_i32 s39, s2, 4224'); e(f's_add_u32 s39, s39, {C["WS_YT"]}')
    for g in range(4):
        e(f'v_cvt_pk_bf16_f32 v16, v{64+4*g}, v{65+4*g}'); e(f'v_cvt_pk_bf16_f32 v17, v{66+4*g}, v{67+4*g}')
        e(f'buffer_store_dwordx2 v[16:17], v10, s[20:23], s39 offen offset:{16*g}'); e('s_nop 1')
    lab('K2_END'); e('s_endpgm')
```

```python
def emit(e, lab, srd, rbf, C, kernels, which):
    g1 = which == 1
    RT = 2 if g1 else 1; MT = 64*RT; KT = 640 if g1 else 1728; NB = 27 if g1 else 5; NWG = NB*(2048//MT)
    ASTR = 144; BSTR = 272; BOFF = MT*ASTR
    nm = f'k{3+which}_kernel'; P = f'G{which}_'
    kernels.append((nm, NWG, 256, BOFF + 64*BSTR, 144, 64))
    lab(nm)
    e(f's_cmp_lt_u32 s2, {NWG}'); e(f's_cbranch_scc1 {P}GO'); e('s_endpgm'); lab(P+'GO')
    e('s_load_dwordx2 s[4:5], s[0:1], 80'); e('s_load_dwordx2 s[6:7], s[0:1], 88'); e('s_load_dwordx2 s[10:11], s[0:1], 96')
    e('s_load_dwordx2 s[8:9], s[0:1], 136'); e('s_load_dwordx2 s[36:37], s[0:1], 120'); e('s_waitcnt lgkmcnt(0)')
    srd(20, 8, C['WSZ'])
    if g1: srd(12, 4, 2211840); srd(16, 6, 2211840)
    else: srd(12, 10, 2211840); srd(16, 10, 2211840); srd(40, 36, 2621440)
    e(f's_mov_b32 s24, {(2**32+NB-1)//NB}'); e('s_mul_hi_u32 s25, s2, s24'); e(f's_mul_i32 s26, s25, {NB}'); e('s_sub_u32 s26, s2, s26')
    AROW = KT*2; BROW = 3456 if g1 else 1280
    e('v_lshrrev_b32 v1, 3, v0'); e('v_and_b32 v2, 7, v0')
    e(f's_mul_i32 s27, s25, {MT}'); e('v_add_u32 v3, s27, v1'); e(f's_movk_i32 s28, {AROW}'); e('v_mul_lo_u32 v3, v3, s28'); e('v_lshl_add_u32 v3, v2, 4, v3')
    e(f's_movk_i32 s28, {ASTR}'); e('v_mul_lo_u32 v4, v1, s28'); e('v_lshl_add_u32 v4, v2, 4, v4')
    e(f's_mov_b32 s29, {C["WS_H2"] if g1 else C["WS_HID"]}')
    e(f's_movk_i32 s28, {BROW}'); e('v_mul_lo_u32 v5, v1, s28'); e('v_lshl_add_u32 v5, v2, 4, v5')
    e(f's_mul_i32 s30, s26, {128 if g1 else 256}'); e(f's_add_u32 s31, s30, {0 if g1 else 128}')
    e(f's_movk_i32 s28, {BSTR}'); e('v_mul_lo_u32 v6, v1, s28'); e('v_lshl_add_u32 v6, v2, 4, v6')
    e('v_lshrrev_b32 v7, 6, v0'); e('v_and_b32 v8, 63, v0'); e('v_lshrrev_b32 v9, 1, v7'); e('v_and_b32 v10, 1, v7')
    e('v_and_b32 v11, 31, v8'); e('v_lshrrev_b32 v12, 5, v8')
    e(f'v_mul_u32_u24 v13, {32*RT}, v9'); e('v_add_u32 v13, v13, v11'); e(f's_movk_i32 s28, {ASTR}'); e('v_mul_lo_u32 v13, v13, s28'); e('v_lshl_add_u32 v13, v12, 4, v13')
    e('v_lshrrev_b32 v14, 4, v8'); e('v_lshrrev_b32 v15, 1, v14'); e('v_lshlrev_b32 v15, 3, v15'); e('v_bfe_u32 v16, v8, 2, 2'); e('v_add_u32 v15, v15, v16')
    e(f's_movk_i32 s28, {BSTR}'); e('v_mul_lo_u32 v15, v15, s28')
    e('v_and_b32 v16, 1, v14'); e('v_lshlrev_b32 v16, 5, v16'); e('v_lshl_add_u32 v16, v10, 6, v16'); e('v_and_b32 v17, 3, v8'); e('v_lshl_add_u32 v16, v17, 3, v16')
    e('v_add_u32 v15, v15, v16'); e(f'v_add_u32 v15, {BOFF}, v15')
    NA = 2*RT
    def gload():
        for i in range(NA): e(f'buffer_load_dwordx4 v[{20+4*i}:{23+4*i}], v3, s[20:23], s29 offen offset:0' if i == 0 else f'buffer_load_dwordx4 v[{20+4*i}:{23+4*i}], v{18 if i==1 else (19 if i==2 else 17)}, s[20:23], s29 offen')
        e('buffer_load_dwordx4 v[36:39], v5, s[12:15], s30 offen'); e(f'buffer_load_dwordx4 v[40:43], v48, s[12:15], s30 offen')
        e('buffer_load_dwordx4 v[44:47], v5, s[16:19], s31 offen'); e(f'buffer_load_dwordx4 v[52:55], v48, s[16:19], s31 offen')
    def addrs():
        e(f'v_add_u32 v18, {32*AROW}, v3')
        if RT == 2: e(f'v_add_u32 v19, {64*AROW}, v3'); e(f'v_add_u32 v17, {96*AROW}, v3')
        e(f'v_add_u32 v48, {32*BROW}, v5')
    for r in range(32*RT): e(f'v_mov_b32 v{64+r}, 0')
    addrs(); gload()
    e('s_mov_b32 s32, 0')
    lab(P+'LOOP')
    e('s_waitcnt vmcnt(0)')
    for i in range(NA): e(f'ds_write_b128 v4, v[{20+4*i}:{23+4*i}] offset:{32*ASTR*i}')
    e(f'ds_write_b128 v6, v[36:39] offset:{BOFF}'); e(f'ds_write_b128 v6, v[40:43] offset:{BOFF+32*BSTR}')
    e(f'ds_write_b128 v6, v[44:47] offset:{BOFF+128}'); e(f'ds_write_b128 v6, v[52:55] offset:{BOFF+32*BSTR+128}')
    e('s_waitcnt lgkmcnt(0)'); e('s_barrier')
    e('s_add_u32 s32, s32, 64'); e(f's_cmp_lt_u32 s32, {KT}'); e(f's_cbranch_scc0 {P}NOLD')
    e('v_add_u32 v3, 128, v3'); e(f'v_add_u32 v5, {64*BROW}, v5'); addrs(); gload()
    lab(P+'NOLD')
    for ks in range(4):
        for t in range(RT): e(f'ds_read_b128 v[{128+4*t}:{131+4*t}], v13 offset:{32*ASTR*t+32*ks}')
        for h in range(2):
            for q in range(2): e(f'ds_read_b64_tr_b16 v[{136+4*h+2*q}:{137+4*h+2*q}], v15 offset:{(16*ks+4*q)*BSTR+128*h}')
        e('s_waitcnt lgkmcnt(0)')
        for t in range(RT):
            for h in range(2):
                a = 64+32*t+16*h
                e(f'v_mfma_f32_32x32x16_bf16 v[{a}:{a+15}], v[{128+4*t}:{131+4*t}], v[{136+4*h}:{139+4*h}], v[{a}:{a+15}]')
    e('s_barrier')
    e(f's_cmp_lt_u32 s32, {KT}'); e(f's_cbranch_scc1 {P}LOOP')
    e('s_nop 15')
    e(f'v_mul_u32_u24 v20, {32*RT}, v9'); e('v_add_u32 v20, s27, v20'); e('v_lshl_add_u32 v20, v12, 2, v20')
    e('v_lshl_add_u32 v21, v10, 5, v11')
    if g1:
        e('s_movk_i32 s28, 3456'); e('v_mul_lo_u32 v22, v20, s28'); e('v_lshl_add_u32 v22, v21, 1, v22'); e('v_add_u32 v22, s30, v22')
        e(f's_mov_b32 s33, {C["WS_HID"]}'); e('s_mov_b32 s34, 0xbfb8aa3b')
        for t in range(RT):
            for reg in range(16):
                row = 32*t + (reg >> 2)*8 + (reg & 3)
                g = f'v{64+32*t+reg}'; u = f'v{80+32*t+reg}'
                rbf(g, g); rbf(u, u)
                e(f'v_mul_f32 v23, s34, {g}'); e('v_exp_f32 v23, v23'); e('s_nop 0'); e('v_add_f32 v23, 1.0, v23'); e('v_rcp_f32 v23, v23'); e('s_nop 0')
                e(f'v_mul_f32 v23, v23, {g}'); rbf('v23', 'v23'); e(f'v_mul_f32 v23, v23, {u}'); e('v_cvt_pk_bf16_f32 v23, v23, v23')
                e(f'v_add_u32 v24, {row*3456}, v22'); e('buffer_store_short v23, v24, s[20:23], s33 offen')
    else:
        e('s_movk_i32 s28, 1280'); e('v_mul_lo_u32 v22, v20, s28'); e('v_lshl_add_u32 v22, v21, 1, v22'); e('v_add_u32 v22, s30, v22')
        e(f's_mov_b32 s33, {C["WS_X1"]}')
        e('s_lshl_b32 s35, s30, 1'); e('s_add_u32 s35, s35, 12800'); e('v_lshlrev_b32 v25, 2, v21')
        for h in range(2):
            e(f'buffer_load_dword v26, v25, s[20:23], s35 offen offset:{256*h}')
            for reg in range(16):
                row = (reg >> 2)*8 + (reg & 3)
                e(f'v_add_u32 v{28+reg}, {row*1280+128*h}, v22'); e(f'buffer_load_ushort v{44+reg}, v{28+reg}, s[20:23], s33 offen')
            e('s_waitcnt vmcnt(0)')
            for reg in range(16):
                a = f'v{64+16*h+reg}'
                rbf(a, a); e(f'v_mul_f32 {a}, {a}, v26'); rbf(a, a); e(f'v_lshlrev_b32 v27, 16, v{44+reg}'); e(f'v_add_f32 {a}, {a}, v27')
                e(f'v_cvt_pk_bf16_f32 {a}, {a}, {a}'); e(f'buffer_store_short {a}, v{28+reg}, s[40:43], 0 offen')
    e('s_endpgm')
```

```python
def emit(e, lab, srd, rbf, wave_sum, C, kernels):
    kernels.append(('k3_kernel', 64, 256, 51200, 168, 64))
    lab('k3_kernel')
    e('s_cmp_lt_u32 s2, 64'); e('s_cbranch_scc1 K3_GO'); e('s_endpgm'); lab('K3_GO')
    e('s_load_dwordx2 s[4:5], s[0:1], 0'); e('s_load_dwordx2 s[6:7], s[0:1], 64'); e('s_load_dwordx2 s[8:9], s[0:1], 136'); e('s_waitcnt lgkmcnt(0)')
    srd(12, 4, 2621440); srd(16, 6, 1280); srd(20, 8, C['WSZ'])
    e('s_lshl_b32 s24, s2, 5')
    e('s_movk_i32 s25, 80'); e('v_mul_lo_u32 v11, v0, s25'); e('v_lshlrev_b32 v12, 12, v0')
    e('s_lshl_b32 s27, s24, 1'); e(f's_add_u32 s27, s27, {C["WS_YT"]}'); e('v_add_u32 v12, s27, v12')
    for q in range(3):
        if q == 2: e('v_cmp_gt_u32 vcc, 128, v0'); e('s_and_saveexec_b64 s[28:29], vcc')
        for z in range(4): e(f'buffer_load_dwordx4 v[{16+4*z}:{19+4*z}], v12, s[20:23], 0 offen offset:{16*z}')
        e('s_waitcnt vmcnt(0)')
        for z in range(4): e(f'ds_write_b128 v11, v[{16+4*z}:{19+4*z}] offset:{20480*q+16*z}')
        e('v_add_u32 v12, 0x100000, v12')
    e('s_mov_b64 exec, s[28:29]')
    e('v_and_b32 v1, 63, v0'); e('v_lshrrev_b32 v2, 6, v0')
    e('v_lshlrev_b32 v3, 2, v1'); e('v_lshlrev_b32 v4, 3, v1')
    for a in range(6): e(f's_mov_b32 s{30+a}, {2560*a}')
    for j in range(5):
        e(f'buffer_load_dword v{40+j}, v3, s[16:19], 0 offen offset:{256*j}')
        for a in range(6):
            r = 50 + (a*5+j)*2
            e(f'buffer_load_dwordx2 v[{r}:{r+1}], v4, s[20:23], s{30+a} offen offset:{512*j}')
    e('s_waitcnt vmcnt(0) lgkmcnt(0)'); e('s_barrier')
    for a in (1, 4):
        for k in range(10): r = 50+a*10+k; e(f'v_add_f32 v{r}, 1.0, v{r}'); rbf(f'v{r}', f'v{r}')
    e('v_lshl_add_u32 v5, v2, 3, s24')
    e('s_movk_i32 s25, 1280'); e('v_mul_lo_u32 v6, v5, s25'); e('v_add_u32 v6, v6, v3')
    e('v_lshlrev_b32 v7, 2, v5')
    e('s_movk_i32 s25, 160'); e('v_mul_lo_u32 v8, v1, s25'); e('v_lshl_add_u32 v8, v2, 4, v8')
    e('s_mov_b32 s26, 0x3acccccd')
    e(f's_mov_b32 s36, {C["WS_ST1"]}'); e(f's_mov_b32 s37, {C["WS_ST1"]+8192}'); e(f's_mov_b32 s38, {C["WS_X1"]}'); e(f's_mov_b32 s39, {C["WS_H2"]}')
    for i in range(8):
        for j in range(5): e(f'buffer_load_dword v{16+j}, v6, s[12:15], 0 offen offset:{256*j}')
        e(f'buffer_load_dword v21, v7, s[20:23], s36 offen offset:{4*i}'); e(f'buffer_load_dword v22, v7, s[20:23], s37 offen offset:{4*i}')
        for j in range(5):
            e(f'ds_read_u16 v{24+2*j}, v8 offset:{j*10240+2*i}'); e(f'ds_read_u16 v{25+2*j}, v8 offset:{j*10240+80+2*i}')
        e('s_waitcnt vmcnt(0) lgkmcnt(0)'); e('v_rcp_f32 v22, v22'); e('v_mov_b32 v9, 0')
        for k in range(10):
            j = k//2; x = f'v{110+k}'
            e(f'v_lshlrev_b32 {x}, 16, v{16+j}' if k % 2 == 0 else f'v_and_b32 {x}, 0xffff0000, v{16+j}')
            e(f'v_sub_f32 v34, {x}, v21'); rbf('v34', 'v34'); e('v_mul_f32 v34, v34, v22'); rbf('v34', 'v34')
            e(f'v_mul_f32 v34, v34, v{60+k}'); rbf('v34', 'v34'); e(f'v_add_f32 v34, v34, v{50+k}'); rbf('v34', 'v34')
            e(f'v_lshlrev_b32 v35, 16, v{40+j}' if k % 2 == 0 else f'v_and_b32 v35, 0xffff0000, v{40+j}')
            e('v_mul_f32 v34, v34, v35'); rbf('v34', 'v34'); e(f'v_lshlrev_b32 v35, 16, v{24+k}'); e('v_add_f32 v34, v34, v35'); rbf('v34', 'v34')
            e(f'v_mul_f32 v34, v34, v{70+k}'); rbf('v34', 'v34'); e(f'v_add_f32 {x}, {x}, v34'); rbf(x, x)
            e(f'v_add_f32 v9, v9, {x}')
        wave_sum('v9', 'v36')
        e('v_readlane_b32 s27, v9, 63'); e('s_nop 3'); e('v_mov_b32 v37, s27'); e('v_mul_f32 v37, s26, v37')
        e('v_mov_b32 v9, 0')
        for k in range(10): e(f'v_sub_f32 v34, v{110+k}, v37'); e('v_fmac_f32 v9, v34, v34')
        wave_sum('v9', 'v36')
        e('v_readlane_b32 s27, v9, 63'); e('s_nop 3'); e('v_mov_b32 v9, s27'); e('v_mul_f32 v9, s26, v9')
        rbf('v9', 'v9'); e('v_add_f32 v9, 0x3727c5ac, v9'); rbf('v9', 'v9'); e('v_sqrt_f32 v9, v9'); e('s_nop 0'); rbf('v9', 'v9'); e('v_rcp_f32 v9, v9')
        rbf('v37', 'v37')
        for k in range(10):
            e(f'v_sub_f32 v34, v{110+k}, v37'); rbf('v34', 'v34'); e('v_mul_f32 v34, v34, v9'); rbf('v34', 'v34')
            e(f'v_mul_f32 v34, v34, v{90+k}'); rbf('v34', 'v34'); e(f'v_add_f32 v{120+k}, v34, v{80+k}')
        for j in range(5):
            e(f'v_cvt_pk_bf16_f32 v34, v{110+2*j}, v{111+2*j}'); e(f'v_cvt_pk_bf16_f32 v35, v{120+2*j}, v{121+2*j}')
            e(f'buffer_store_dword v34, v6, s[20:23], s38 offen offset:{256*j}'); e(f'buffer_store_dword v35, v6, s[20:23], s39 offen offset:{256*j}')
        e('v_add_u32 v6, 1280, v6')
    e('s_endpgm')
```

```python
def emit(e, lab, srd, rbf, C):
    lab('K0_KG')
    for i, off in enumerate([8, 16, 24, 32, 40, 48]): e(f's_load_dwordx2 s[{4+2*i}:{5+2*i}], s[0:1], {off}')
    e('s_load_dwordx2 s[16:17], s[0:1], 56'); e('s_load_dwordx2 s[18:19], s[0:1], 136')
    e('s_waitcnt lgkmcnt(0)')
    srd(20, 18, C['WSZ']); srd(24, 16, 1280)
    e('s_sub_u32 s3, s2, 184')
    e('v_and_b32 v1, 127, v0'); e('v_lshrrev_b32 v2, 7, v0')
    e('s_lshl_b32 s40, s3, 8'); e('v_lshl_add_u32 v3, v1, 1, s40')
    for i in range(6):
        srd(28, 4+2*i, 163840); e(f'buffer_load_ushort v{10+i}, v3, s[28:31], 0 offen')
    e('s_lshl_b32 s41, s3, 1'); e('v_mov_b32 v4, s41'); e('buffer_load_ushort v16, v4, s[24:27], 0 offen')
    e('s_waitcnt vmcnt(0)')
    for i in range(7): e(f'v_lshlrev_b32 v{10+i}, 16, v{10+i}')
    e('s_mov_b32 s42, 0x3fb8aa3b'); e('s_mov_b32 s43, 0x3e22f983')
    e('v_mul_f32 v16, s42, v16'); e('v_exp_f32 v16, v16'); e('s_nop 0'); rbf('v16', 'v16')
    e('v_mul_f32 v10, v16, v10'); e('v_mul_f32 v11, v16, v11'); e('v_mul_f32 v12, v16, v12'); e('v_mul_f32 v13, v16, v13')
    e('v_mul_f32 v10, s42, v10'); e('v_mul_f32 v11, s43, v11')
    e('v_mul_f32 v17, v14, v12'); e('v_fma_f32 v17, -v15, v13, v17'); e('v_mul_f32 v18, v14, v13'); e('v_fma_f32 v18, v15, v12, v18')
    e('v_cmp_eq_u32 vcc, 1, v2'); e('s_mov_b64 s[44:45], vcc')
    def cexp(x, dr, di):
        e(f'v_mul_f32 v40, v10, {x}'); e(f'v_mul_f32 v41, v11, {x}'); e('v_exp_f32 v40, v40'); e('v_fract_f32 v41, v41')
        e('v_cos_f32 v42, v41'); e('v_sin_f32 v43, v41'); e('s_nop 0'); e(f'v_mul_f32 {dr}, v40, v42'); e(f'v_mul_f32 {di}, v40, v43')
    def cmul(ar, ai, br, bi):
        e(f'v_mul_f32 v44, {ar}, {br}'); e(f'v_mul_f32 v45, {ar}, {bi}'); e(f'v_fma_f32 v44, -{ai}, {bi}, v44'); e(f'v_fma_f32 v45, {ai}, {br}, v45')
        e(f'v_mov_b32 {ar}, v44'); e(f'v_mov_b32 {ai}, v45')
    e('v_lshl_add_u32 v5, v2, 7, v1'); e('s_movk_i32 s46, 136'); e('v_mul_lo_u32 v5, v5, s46')
    e('v_and_b32 v6, 63, v0'); e('v_lshrrev_b32 v7, 6, v0')
    e('v_lshrrev_b32 v8, 1, v7'); e('s_movk_i32 s46, 17408'); e('v_mul_lo_u32 v8, v8, s46')
    e('v_and_b32 v9, 1, v7'); e('v_lshlrev_b32 v9, 7, v9'); e('v_lshrrev_b32 v46, 4, v6'); e('v_add_u32 v9, v9, v46')
    e('s_movk_i32 s46, 68'); e('v_mul_lo_u32 v9, v9, s46'); e('v_and_b32 v46, 15, v6'); e('v_lshl_add_u32 v9, v46, 2, v9'); e('v_add_u32 v9, v9, v8')
    import struct
    fl = lambda x: hex(struct.unpack('<I', struct.pack('<f', x))[0])
    for p in range(2):
        st = [float(2**(2*p)), float(2**(2*p+1))]; bs = [[0., 256.], [512., 1024.]][p]
        e(f'v_mov_b32 v47, {fl(st[1])}'); e(f'v_mov_b32 v20, {fl(st[0])}'); e('v_cndmask_b32 v20, v20, v47, s[44:45]')
        e(f'v_mov_b32 v47, {fl(bs[1])}'); e(f'v_mov_b32 v21, {fl(bs[0])}'); e('v_cndmask_b32 v21, v21, v47, s[44:45]')
        e('v_mul_f32 v22, 16.0, v20')
        cexp('v20', 'v24', 'v25'); cexp('v22', 'v26', 'v27'); cexp('v21', 'v28', 'v29')
        cmul('v28', 'v29', 'v17', 'v18')
        e('v_mov_b32 v30, 1.0'); e('v_mov_b32 v31, 0')
        if p == 1: e('s_barrier')
        for i in range(16):
            e('v_sub_f32 v32, 0, v29')
            e(f'ds_write_b32 v5, v28 offset:{4*i}'); e(f'ds_write_b32 v5, v32 offset:{68+4*i}')
            e(f'ds_write_b32 v5, v30 offset:{34816+4*i}'); e(f'ds_write_b32 v5, v31 offset:{34816+68+4*i}')
            if i < 15: cmul('v28', 'v29', 'v26', 'v27'); cmul('v30', 'v31', 'v24', 'v25')
        e('s_waitcnt lgkmcnt(0)'); e('s_barrier')
        for r in range(4): e(f'v_mov_b32 v{48+r}, 0')
        for kk in range(32):
            e(f'ds_read_b32 v{52+(kk&1)*2}, v9 offset:{272*kk}'); e(f'ds_read_b32 v{53+(kk&1)*2}, v9 offset:{34816+272*kk}')
            e('s_waitcnt lgkmcnt(0)')
            e(f'v_mfma_f32_16x16x4_f32 v[48:51], v{52+(kk&1)*2}, v{53+(kk&1)*2}, v[48:51]')
        e('s_nop 15'); e('s_nop 3')
        e('v_lshlrev_b32 v56, 10, v7'); e('v_lshrrev_b32 v57, 4, v6'); e('v_lshl_add_u32 v56, v57, 8, v56'); e('v_and_b32 v57, 15, v6'); e('v_lshl_add_u32 v56, v57, 2, v56'); e('v_add_u32 v56, 0x10000, v56')
        for r in range(4): e(f'ds_write_b32 v56, v{48+r} offset:{4096+64*r}')
        e('s_waitcnt lgkmcnt(0)'); e('s_barrier')
        e('v_lshlrev_b32 v56, 2, v0'); e('v_add_u32 v56, 0x10000, v56')
        for sg in range(2):
            s = 2*p+sg; off = [0, 256, 384, 512][s]; lim = [256, 128, 128, 129][s]
            e(f'ds_read_b32 v57, v56 offset:{4096+2048*sg}'); e(f'ds_read_b32 v58, v56 offset:{4096+2048*sg+1024}')
            e('s_waitcnt lgkmcnt(0)'); e('v_add_f32 v57, v57, v58')
            e(f'v_cmp_gt_u32 vcc, {lim}, v0'); e('s_and_saveexec_b64 s[48:49], vcc')
            e(f'ds_write_b32 v56, v57 offset:{8192+4*off}'); e('s_mov_b64 exec, s[48:49]')
    e('s_waitcnt lgkmcnt(0)'); e('s_barrier')
    e(f's_mul_i32 s50, s3, {C["KREV_STRIDE"]}'); e(f's_add_u32 s50, s50, {C["WS_KREV"]}')
    for j in range(9):
        e(f'v_add_u32 v60, {256*j}, v0'); e('v_sub_u32 v61, 2047, v60')
        e('v_max_i32 v62, 0, v61'); e('v_cvt_f32_u32 v62, v62'); rbf('v62', 'v62'); e('v_cvt_u32_f32 v62, v62')
        e('v_mov_b32 v63, v62')
        for (lo, base, sh) in [(256, 256, 1), (512, 384, 2), (1024, 512, 3)]:
            e(f'v_subrev_u32 v64, {lo}, v62'); e(f'v_lshrrev_b32 v64, {sh}, v64'); e(f'v_add_u32 v64, {base}, v64')
            e(f'v_cmp_le_u32 vcc, {lo}, v62'); e('s_nop 1'); e('v_cndmask_b32 v63, v63, v64, vcc')
        e('v_lshlrev_b32 v63, 2, v63'); e('v_add_u32 v63, 0x10000, v63'); e('ds_read_b32 v64, v63 offset:8192'); e('s_waitcnt lgkmcnt(0)')
        e('v_cmp_gt_i32 vcc, 0, v61'); e('s_nop 1'); e('v_cndmask_b32 v64, v64, 0, vcc')
        e('v_cvt_pk_bf16_f32 v64, v64, v64'); e('v_lshlrev_b32 v65, 1, v60')
        e('v_cmp_gt_u32 vcc, 2096, v60'); e('s_and_saveexec_b64 s[48:49], vcc')
        e('buffer_store_short v64, v65, s[20:23], s50 offen'); e('s_mov_b64 exec, s[48:49]')
    e('s_endpgm')
```

```python
import sys
L = []
def e(s): L.append('    ' + s)
def lab(s): L.append(s + ':')
WS_MOD=0; WS_ST1=16384; WS_XT=0x10000; WS_KREV=0x300000; KREV_STRIDE=4192; WS_YT=0x600000; WS_X1=0x900000; WS_H2=0xC00000; WS_HID=0x1000000
WSZ=268435456
def srd(d, base, n):
    e(f's_mov_b32 s{d}, s{base}'); e(f's_and_b32 s{d+1}, s{base+1}, 0xffff'); e(f's_mov_b32 s{d+2}, {n}'); e(f's_mov_b32 s{d+3}, 0x20000')
def rbf(dst, src):
    e(f'v_cvt_pk_bf16_f32 {dst}, {src}, {src}'); e(f'v_lshlrev_b32 {dst}, 16, {dst}')
def wave_sum(v, t):
    for ctl in ['row_shr:1 row_mask:0xf', 'row_shr:2 row_mask:0xf', 'row_shr:4 row_mask:0xf', 'row_shr:8 row_mask:0xf', 'row_bcast:15 row_mask:0xa', 'row_bcast:31 row_mask:0xc']:
        e(f'v_mov_b32 {t}, 0'); e('s_nop 1')
        e(f'v_mov_b32_dpp {t}, {v} {ctl} bank_mask:0xf')
        e(f'v_add_f32 {v}, {v}, {t}')
        e('s_nop 1')
kernels = []

def k0():
    kernels.append(('k0_kernel', 824, 256, 77824, 128, 64))
    lab('k0_kernel')
    e('s_cmp_lt_u32 s2, 120'); e('s_cbranch_scc1 K0_MOD')
    e('s_cmp_lt_u32 s2, 184'); e('s_cbranch_scc1 K0_ST')
    e('s_cmp_lt_u32 s2, 824'); e('s_cbranch_scc1 K0_KG')
    e('s_endpgm')
    lab('K0_MOD')
    e('s_load_dwordx2 s[4:5], s[0:1], 104'); e('s_load_dwordx2 s[6:7], s[0:1], 112'); e('s_load_dwordx2 s[8:9], s[0:1], 136')
    e('s_waitcnt lgkmcnt(0)')
    srd(12, 4, 1280); srd(16, 6, 4915200); srd(20, 8, WSZ)
    e('v_lshlrev_b32 v1, 1, v0')
    for j in range(3): e(f'buffer_load_ushort v{2+j}, v1, s[12:15], 0 offen offset:{512*j}')
    e('s_mov_b32 s24, 0xbfb8aa3b')
    e('v_lshlrev_b32 v8, 2, v0')
    e('s_waitcnt vmcnt(0)')
    for j in range(3):
        x=f'v{2+j}'
        e(f'v_lshlrev_b32 {x}, 16, {x}'); e(f'v_mul_f32 v5, s24, {x}'); e('v_exp_f32 v5, v5'); e('s_nop 0')
        e('v_add_f32 v5, 1.0, v5'); e('v_rcp_f32 v5, v5'); e('s_nop 0'); e(f'v_mul_f32 v5, v5, {x}')
        rbf('v5', 'v5'); e(f'ds_write_b32 v8, v5 offset:{1024*j}')
    e('v_and_b32 v6, 15, v0'); e('v_lshrrev_b32 v7, 4, v0')
    e('s_mov_b32 s25, 7680'); e('v_mul_lo_u32 v9, v7, s25'); e('s_lshl_b32 s26, s2, 6')
    e('v_lshl_add_u32 v9, v6, 2, v9'); e('v_add_u32 v9, s26, v9')
    e('s_mov_b32 s27, 122880')
    for s in range(40):
        e(f'buffer_load_dword v{16+s}, v9, s[16:19], 0 offen')
        if s < 39: e('v_add_u32 v9, s27, v9')
    e('s_waitcnt lgkmcnt(0)'); e('s_barrier')
    e('v_lshlrev_b32 v10, 2, v7')
    for s in range(40): e(f'ds_read_b32 v{60+s}, v10 offset:{64*s}')
    e('v_mov_b32 v12, 0'); e('v_mov_b32 v13, 0')
    e('s_waitcnt vmcnt(0) lgkmcnt(0)')
    for s in range(40):
        e(f'v_lshlrev_b32 v14, 16, v{16+s}'); e(f'v_and_b32 v15, 0xffff0000, v{16+s}')
        e(f'v_fmac_f32 v12, v{60+s}, v14'); e(f'v_fmac_f32 v13, v{60+s}, v15')
    e('v_lshlrev_b32 v10, 7, v7'); e('v_lshl_add_u32 v10, v6, 3, v10')
    e('ds_write_b64 v10, v[12:13] offset:4096')
    e('s_waitcnt lgkmcnt(0)'); e('s_barrier')
    e('v_cmp_gt_u32 vcc, 32, v0'); e('s_and_saveexec_b64 s[28:29], vcc'); e('s_cbranch_execz K0_MOD_END')
    e('v_lshlrev_b32 v10, 2, v0')
    for r in range(16): e(f'ds_read_b32 v{16+r}, v10 offset:{4096+128*r}')
    e('s_waitcnt lgkmcnt(0)')
    for r in range(1, 16): e(f'v_add_f32 v16, v16, v{16+r}')
    rbf('v16', 'v16')
    e('s_lshl_b32 s26, s2, 7'); e('v_add_u32 v10, s26, v10')
    e(f'buffer_store_dword v16, v10, s[20:23], 0 offen offset:{WS_MOD}')
    lab('K0_MOD_END'); e('s_endpgm')
    lab('K0_ST')
    e('s_load_dwordx2 s[4:5], s[0:1], 0'); e('s_load_dwordx2 s[8:9], s[0:1], 136')
    e('s_waitcnt lgkmcnt(0)')
    srd(12, 4, 2621440); srd(20, 8, WSZ)
    e('s_sub_u32 s3, s2, 120'); e('s_lshl_b32 s24, s3, 5')
    e('v_and_b32 v1, 63, v0'); e('v_lshrrev_b32 v2, 6, v0')
    e('v_lshl_add_u32 v3, v2, 3, s24'); e('s_movk_i32 s25, 1280'); e('v_mul_lo_u32 v3, v3, s25'); e('v_lshl_add_u32 v3, v1, 2, v3')
    for i in range(8):
        for j in range(5): e(f'buffer_load_dword v{16+i*5+j}, v3, s[12:15], 0 offen offset:{256*j}')
        e('v_add_u32 v3, 1280, v3')
    e('s_waitcnt vmcnt(0)')
    e('s_mov_b32 s26, 0x3acccccd')
    for i in range(8):
        r0 = 16+i*5
        e('v_mov_b32 v5, 0')
        for j in range(5):
            e(f'v_lshlrev_b32 v6, 16, v{r0+j}'); e(f'v_and_b32 v7, 0xffff0000, v{r0+j}'); e('v_add_f32 v5, v5, v6'); e('v_add_f32 v5, v5, v7')
        wave_sum('v5', 'v8')
        e('v_readlane_b32 s27, v5, 63'); e('s_nop 3'); e('v_mov_b32 v9, s27'); e('v_mul_f32 v9, s26, v9')
        e('v_mov_b32 v5, 0')
        for j in range(5):
            e(f'v_lshlrev_b32 v6, 16, v{r0+j}'); e(f'v_and_b32 v7, 0xffff0000, v{r0+j}'); e('v_sub_f32 v6, v6, v9'); e('v_sub_f32 v7, v7, v9')
            e('v_fmac_f32 v5, v6, v6'); e('v_fmac_f32 v5, v7, v7')
        wave_sum('v5', 'v8')
        e('v_readlane_b32 s27, v5, 63'); e('s_nop 3'); e('v_mov_b32 v5, s27'); e('v_mul_f32 v5, s26, v5')
        rbf('v5', 'v5'); e('v_add_f32 v5, 0x3727c5ac, v5'); rbf('v5', 'v5'); e('v_sqrt_f32 v5, v5'); e('s_nop 0'); rbf('v5', 'v5')
        rbf('v9', 'v9')
        e('v_lshl_add_u32 v10, v2, 3, s24'); e(f'v_add_u32 v10, {i}, v10'); e('v_lshlrev_b32 v10, 2, v10')
        e('v_cmp_eq_u32 vcc, 0, v1'); e('s_and_saveexec_b64 s[28:29], vcc')
        e(f'buffer_store_dword v9, v10, s[20:23], 0 offen offset:0 ' .replace('offset:0', '') + '')
        L[-1] = f'    buffer_store_dword v9, v10, s[20:23], s30 offen'
        L.insert(len(L)-1, f'    s_mov_b32 s30, {WS_ST1}')
        e(f's_mov_b32 s30, {WS_ST1+8192}'); e('buffer_store_dword v5, v10, s[20:23], s30 offen')
        e('s_mov_b64 exec, s[28:29]')
    e('v_lshlrev_b32 v11, 4, v2')
    e('s_movk_i32 s25, 160'); e('v_mul_lo_u32 v12, v1, s25'); e('v_add_u32 v11, v11, v12')
    for p in range(4):
        for j in range(5):
            a=16+(2*p)*5+j; b=16+(2*p+1)*5+j
            e(f'v_perm_b32 v13, v{b}, v{a}, s31') if False else None
            e(f'v_and_b32 v13, 0xffff, v{a}'); e(f'v_lshl_or_b32 v13, v{b}, 16, v13')
            e(f'v_lshrrev_b32 v14, 16, v{a}'); e(f'v_and_or_b32 v14, v{b}, s33, v14')
            e(f'ds_write_b32 v11, v13 offset:{j*10240+4*p}'); e(f'ds_write_b32 v11, v14 offset:{j*10240+80+4*p}')
    idx = [i for i,s in enumerate(L) if 'v_lshlrev_b32 v11, 4, v2' in s][-1]
    L.insert(idx, '    s_mov_b32 s33, 0xffff0000')
    e('s_waitcnt lgkmcnt(0)'); e('s_barrier')
    e('s_movk_i32 s25, 80'); e('v_mul_lo_u32 v11, v0, s25')
    e(f'v_lshlrev_b32 v12, 12, v0'); e('s_lshl_b32 s27, s24, 1'); e(f's_add_u32 s27, s27, {WS_XT}'); e('v_add_u32 v12, s27, v12')
    for q in range(3):
        if q == 2:
            e('v_cmp_gt_u32 vcc, 128, v0'); e('s_and_saveexec_b64 s[28:29], vcc'); e('s_cbranch_execz K0_ST_END')
        for z in range(4): e(f'ds_read_b128 v[{16+4*z}:{19+4*z}], v11 offset:{20480*q+16*z}')
        e('s_waitcnt lgkmcnt(0)')
        for z in range(4): e(f'buffer_store_dwordx4 v[{16+4*z}:{19+4*z}], v12, s[20:23], 0 offen offset:{16*z}')
        e('v_add_u32 v12, 0x100000, v12'); e('s_waitcnt vmcnt(0)')
    lab('K0_ST_END'); e('s_endpgm')
    import kgen; kgen.emit(e, lab, srd, rbf, dict(WSZ=WSZ, WS_KREV=WS_KREV, KREV_STRIDE=KREV_STRIDE))

def finish(path):
    hdr = ''
    for (n, g, b, lds, vg, sg) in kernels: hdr += f'; @launch kernel={n} grid=({g},1,1) block=({b},1,1) lds={lds}\n'
    s = hdr + '.amdgcn_target "amdgcn-amd-amdhsa--gfx950"\n.text\n'
    body = '\n'.join(L)
    for (n, *_ ) in kernels:
        body = body.replace(f'{n}:', f'.globl {n}\n.p2align 8\n.type {n},@function\n{n}:')
    s += body + '\n.section .rodata,"a"\n'
    for (n, g, b, lds, vg, sg) in kernels:
        s += f'.p2align 6\n.amdhsa_kernel {n}\n  .amdhsa_next_free_vgpr {vg}\n  .amdhsa_next_free_sgpr {sg}\n  .amdhsa_accum_offset {vg}\n  .amdhsa_group_segment_fixed_size 0\n  .amdhsa_kernarg_size 144\n  .amdhsa_user_sgpr_count 2\n  .amdhsa_user_sgpr_kernarg_segment_ptr 1\n  .amdhsa_system_sgpr_workgroup_id_x 1\n.end_amdhsa_kernel\n'
    open(path, 'w').write(s)

if __name__ == '__main__':
    k0()
    import conv; conv.emit(e, lab, srd, rbf, dict(WSZ=WSZ, WS_KREV=WS_KREV, KREV_STRIDE=KREV_STRIDE, WS_XT=WS_XT, WS_ST1=WS_ST1, WS_YT=WS_YT), kernels)
    import k3; k3.emit(e, lab, srd, rbf, wave_sum, dict(WSZ=WSZ, WS_ST1=WS_ST1, WS_YT=WS_YT, WS_X1=WS_X1, WS_H2=WS_H2), kernels)
    import gemm
    for w in (1, 2): gemm.emit(e, lab, srd, rbf, dict(WSZ=WSZ, WS_X1=WS_X1, WS_H2=WS_H2, WS_HID=WS_HID), kernels, w)
    finish(sys.argv[1] if len(sys.argv) > 1 else 't.s')
```

```python
def emit(e, lab, srd, rbf, C, kernels, which):
    g1 = which == 1
    RT = 2 if g1 else 1; MT = 64*RT; KT = 640 if g1 else 1728; NB = 27 if g1 else 10; HN = 2 if g1 else 1; NWG = NB*(2048//MT)
    KS = 128 if g1 else 192; ASTR = KS*2+16; BSTR = 320 if g1 else 192; BOFF = MT*ASTR
    nm = f'k{3+which}_kernel'; P = f'G{which}_'
    kernels.append((nm, NWG, 256, BOFF + KS*BSTR, 256, 64))
    lab(nm)
    e(f's_cmp_lt_u32 s2, {NWG}'); e(f's_cbranch_scc1 {P}GO'); e('s_endpgm'); lab(P+'GO')
    e('s_load_dwordx2 s[4:5], s[0:1], 80'); e('s_load_dwordx2 s[6:7], s[0:1], 88'); e('s_load_dwordx2 s[10:11], s[0:1], 96')
    e('s_load_dwordx2 s[8:9], s[0:1], 136'); e('s_load_dwordx2 s[36:37], s[0:1], 120'); e('s_waitcnt lgkmcnt(0)')
    srd(20, 8, C['WSZ'])
    if g1: srd(12, 4, 2211840); srd(16, 6, 2211840)
    else: srd(12, 10, 2211840); srd(16, 10, 2211840); srd(40, 36, 2621440)
    e(f's_mov_b32 s24, {(2**32+NB-1)//NB}'); e('s_lshr_b32 s38, s2, 3'); e('s_mul_hi_u32 s25, s38, s24'); e(f's_mul_i32 s26, s25, {NB}'); e('s_sub_u32 s26, s38, s26'); e('s_and_b32 s39, s2, 7'); e('s_lshl_b32 s25, s25, 3'); e('s_add_u32 s25, s25, s39')
    AROW = KT*2; BROW = 3456 if g1 else 1280
    e('v_lshrrev_b32 v1, 3, v0'); e('v_and_b32 v2, 7, v0')
    e(f's_mul_i32 s27, s25, {MT}'); e('v_add_u32 v3, s27, v1'); e(f's_movk_i32 s28, {AROW}'); e('v_mul_lo_u32 v3, v3, s28'); e('v_lshl_add_u32 v3, v2, 4, v3')
    e(f's_movk_i32 s28, {ASTR}'); e('v_mul_lo_u32 v4, v1, s28'); e('v_lshl_add_u32 v4, v2, 4, v4')
    e(f's_mov_b32 s29, {C["WS_H2"] if g1 else C["WS_HID"]}')
    e(f's_movk_i32 s28, {BROW}'); e('v_mul_lo_u32 v5, v1, s28'); e('v_lshl_add_u32 v5, v2, 4, v5')
    e(f's_mul_i32 s30, s26, 128'); e(f's_add_u32 s31, s30, {0 if g1 else 128}')
    e(f's_movk_i32 s28, {BSTR}'); e('v_mul_lo_u32 v6, v1, s28'); e('v_lshl_add_u32 v6, v2, 4, v6')
    e('v_lshrrev_b32 v7, 6, v0'); e('v_and_b32 v8, 63, v0'); e('v_lshrrev_b32 v9, 1, v7'); e('v_and_b32 v10, 1, v7')
    e('v_and_b32 v11, 31, v8'); e('v_lshrrev_b32 v12, 5, v8')
    e(f'v_mul_u32_u24 v13, {32*RT}, v9'); e('v_add_u32 v13, v13, v11'); e(f's_movk_i32 s28, {ASTR}'); e('v_mul_lo_u32 v13, v13, s28'); e('v_lshl_add_u32 v13, v12, 4, v13')
    e('v_lshrrev_b32 v14, 4, v8'); e('v_lshrrev_b32 v15, 1, v14'); e('v_lshlrev_b32 v15, 3, v15'); e('v_bfe_u32 v16, v8, 2, 2'); e('v_add_u32 v15, v15, v16')
    e(f's_movk_i32 s28, {BSTR}'); e('v_mul_lo_u32 v15, v15, s28')
    e('v_and_b32 v16, 1, v14'); e('v_lshlrev_b32 v16, 5, v16'); e('v_lshl_add_u32 v16, v10, 6, v16'); e('v_and_b32 v17, 3, v8'); e('v_lshl_add_u32 v16, v17, 3, v16')
    e('v_add_u32 v15, v15, v16'); e(f'v_add_u32 v15, {BOFF}, v15')
    NA = 2*RT; CP = KS//64; KP = KS//32
    def gload(base=144):
        n = base
        for i in range(NA):
            for cp in range(CP):
                e(f'v_add_u32 v18, {32*AROW*i+128*cp}, v3'); e(f'buffer_load_dwordx4 v[{n}:{n+3}], v18, s[20:23], s29 offen'); n += 4
        for kp in range(KP):
            e(f'v_add_u32 v18, {32*BROW*kp}, v5')
            e(f'buffer_load_dwordx4 v[{n}:{n+3}], v18, s[12:15], s30 offen')
            if HN == 2: e(f'buffer_load_dwordx4 v[{n+4}:{n+7}], v18, s[16:19], s31 offen')
            n += 4*HN
    def addrs(): pass
    for r in range(32*RT): e(f'v_mov_b32 v{64+r}, 0')
    NIT = KT//KS; SET = 4*(NA*CP + KP*HN); D2 = not g1
    def wr(base):
        n = base
        for i in range(NA):
            for cp in range(CP): e(f'ds_write_b128 v4, v[{n}:{n+3}] offset:{32*ASTR*i+128*cp}'); n += 4
        for kp in range(KP):
            e(f'v_add_u32 v18, {BOFF+32*BSTR*kp}, v6'); e(f'ds_write_b128 v18, v[{n}:{n+3}]')
            if HN == 2: e(f'ds_write_b128 v18, v[{n+4}:{n+7}] offset:128')
            n += 4*HN
    def adv(): e(f'v_add_u32 v3, {2*KS}, v3'); e(f'v_add_u32 v5, {KS*BROW}, v5')
    RING = [128, 240] if g1 else [128, 136, 240, 248]; DEP = len(RING); BO = 8 if g1 else 4
    def rd(ks):
        o = RING[ks % DEP]
        for t in range(RT): e(f'ds_read_b128 v[{o+4*t}:{o+3+4*t}], v13 offset:{32*ASTR*t+32*ks}')
        for h in range(HN):
            for q in range(2): e(f'ds_read_b64_tr_b16 v[{o+BO+4*h+2*q}:{o+BO+1+4*h+2*q}], v15 offset:{(16*ks+4*q)*BSTR+128*h}')
    gload(144)
    if D2: adv(); gload(144+SET)
    for it in range(NIT):
        base = 144 + (SET*(it % 2) if D2 else 0)
        inflight = D2 and it+1 < NIT
        e(f's_waitcnt vmcnt({SET//4 if inflight else 0})')
        wr(base)
        e('s_waitcnt lgkmcnt(0)'); e('s_barrier')
        if it + (2 if D2 else 1) < NIT: adv(); gload(base)
        NK = KS//16; PER = RT+2*HN
        for ks in range(DEP-1): rd(ks)
        for ks in range(NK):
            o = RING[ks % DEP]
            if ks + DEP - 1 < NK: rd(ks+DEP-1)
            out = min(NK-1, ks+DEP-1) - ks
            e(f's_waitcnt lgkmcnt({PER*out})')
            for t in range(RT):
                for h in range(HN):
                    a = 64+32*t+16*h
                    e(f'v_mfma_f32_32x32x16_bf16 v[{a}:{a+15}], v[{o+4*t}:{o+3+4*t}], v[{o+BO+4*h}:{o+BO+3+4*h}], v[{a}:{a+15}]')
        e('s_barrier')
    e('s_nop 15')
    e(f'v_mul_u32_u24 v20, {32*RT}, v9'); e('v_add_u32 v20, s27, v20'); e('v_lshl_add_u32 v20, v12, 2, v20')
    e('v_lshl_add_u32 v21, v10, 5, v11')
    if g1:
        e('s_movk_i32 s28, 3456'); e('v_mul_lo_u32 v22, v20, s28'); e('v_lshl_add_u32 v22, v21, 1, v22'); e('v_add_u32 v22, s30, v22')
        e(f's_mov_b32 s33, {C["WS_HID"]}'); e('s_mov_b32 s34, 0xbfb8aa3b')
        for t in range(RT):
            for reg in range(16):
                row = 32*t + (reg >> 2)*8 + (reg & 3)
                g = f'v{64+32*t+reg}'; u = f'v{80+32*t+reg}'
                rbf(g, g); rbf(u, u)
                e(f'v_mul_f32 v23, s34, {g}'); e('v_exp_f32 v23, v23'); e('s_nop 0'); e('v_add_f32 v23, 1.0, v23'); e('v_rcp_f32 v23, v23'); e('s_nop 0')
                e(f'v_mul_f32 v23, v23, {g}'); rbf('v23', 'v23'); e(f'v_mul_f32 v23, v23, {u}'); e('v_cvt_pk_bf16_f32 v23, v23, v23')
                e(f'v_add_u32 v24, {row*3456}, v22'); e('buffer_store_short v23, v24, s[20:23], s33 offen')
    else:
        e('s_movk_i32 s28, 1280'); e('v_mul_lo_u32 v22, v20, s28'); e('v_lshl_add_u32 v22, v21, 1, v22'); e('v_add_u32 v22, s30, v22')
        e(f's_mov_b32 s33, {C["WS_X1"]}')
        e('s_lshl_b32 s35, s30, 1'); e('s_add_u32 s35, s35, 12800'); e('v_lshlrev_b32 v25, 2, v21')
        for h in range(HN):
            e(f'buffer_load_dword v26, v25, s[20:23], s35 offen offset:{256*h}')
            for reg in range(16):
                row = (reg >> 2)*8 + (reg & 3)
                e(f'v_add_u32 v{28+reg}, {row*1280+128*h}, v22'); e(f'buffer_load_ushort v{44+reg}, v{28+reg}, s[20:23], s33 offen')
            e('s_waitcnt vmcnt(0)')
            for reg in range(16):
                a = f'v{64+16*h+reg}'
                rbf(a, a); e(f'v_mul_f32 {a}, {a}, v26'); rbf(a, a); e(f'v_lshlrev_b32 v27, 16, v{44+reg}'); e(f'v_add_f32 {a}, {a}, v27')
                e(f'v_cvt_pk_bf16_f32 {a}, {a}, {a}'); e(f'buffer_store_short {a}, v{28+reg}, s[40:43], 0 offen')
    e('s_endpgm')
```

```python
def emit(e, lab, srd, rbf, wave_sum, C, kernels):
    kernels.append(('k3_kernel', 512, 256, 51200, 168, 64))
    lab('k3_kernel')
    e('s_cmp_lt_u32 s2, 512'); e('s_cbranch_scc1 K3_GO'); e('s_endpgm'); lab('K3_GO')
    e('s_load_dwordx2 s[4:5], s[0:1], 0'); e('s_load_dwordx2 s[6:7], s[0:1], 64'); e('s_load_dwordx2 s[8:9], s[0:1], 136'); e('s_waitcnt lgkmcnt(0)')
    srd(12, 4, 2621440); srd(16, 6, 1280); srd(20, 8, C['WSZ'])
    e('s_lshl_b32 s24, s2, 2')
    e('s_movk_i32 s25, 80'); e('v_mul_lo_u32 v11, v0, s25'); e('s_movk_i32 s25, 4224'); e('v_mul_lo_u32 v12, v0, s25')
    e('s_lshl_b32 s27, s24, 1'); e(f's_add_u32 s27, s27, {C["WS_YT"]}'); e('v_add_u32 v12, s27, v12')
    for q in range(3):
        if q == 2: e('v_cmp_gt_u32 vcc, 128, v0'); e('s_and_saveexec_b64 s[28:29], vcc')
        e(f'buffer_load_dwordx2 v[{16+2*q}:{17+2*q}], v12, s[20:23], 0 offen')
        e('v_add_u32 v12, 0x108000, v12')
    e('s_mov_b64 exec, s[28:29]')
    e('v_and_b32 v1, 63, v0'); e('v_lshrrev_b32 v2, 6, v0')
    e('v_lshlrev_b32 v3, 2, v1'); e('v_lshlrev_b32 v4, 3, v1')
    for a in range(6): e(f's_mov_b32 s{30+a}, {2560*a}')
    for j in range(5):
        e(f'buffer_load_dword v{40+j}, v3, s[16:19], 0 offen offset:{256*j}')
        for a in range(6):
            r = 50 + (a*5+j)*2
            e(f'buffer_load_dwordx2 v[{r}:{r+1}], v4, s[20:23], s{30+a} offen offset:{512*j}')
    e('v_add_u32 v5, s24, v2'); e('s_movk_i32 s25, 1280'); e('v_mul_lo_u32 v6, v5, s25'); e('v_add_u32 v6, v6, v3'); e('v_lshlrev_b32 v7, 2, v5')
    e(f's_mov_b32 s36, {C["WS_ST1"]}'); e(f's_mov_b32 s37, {C["WS_ST1"]+8192}')
    for i in range(1):
        for j in range(5): e(f'buffer_load_dword v{140+7*i+j}, v6, s[12:15], 0 offen offset:{1280*i+256*j}')
        e(f'buffer_load_dword v{145+7*i}, v7, s[20:23], s36 offen offset:{4*i}'); e(f'buffer_load_dword v{146+7*i}, v7, s[20:23], s37 offen offset:{4*i}')
    e('s_waitcnt vmcnt(0)')
    e('ds_write_b64 v11, v[16:17]'); e('ds_write_b64 v11, v[18:19] offset:20480')
    e('v_cmp_gt_u32 vcc, 128, v0'); e('s_and_saveexec_b64 s[28:29], vcc'); e('ds_write_b64 v11, v[20:21] offset:40960'); e('s_mov_b64 exec, s[28:29]')
    e('s_waitcnt vmcnt(0) lgkmcnt(0)'); e('s_barrier')
    for a in (1, 4):
        for k in range(10): r = 50+a*10+k; e(f'v_add_f32 v{r}, 1.0, v{r}'); rbf(f'v{r}', f'v{r}')
    e('v_add_u32 v5, s24, v2')
    e('s_movk_i32 s25, 1280'); e('v_mul_lo_u32 v6, v5, s25'); e('v_add_u32 v6, v6, v3')
    e('v_lshlrev_b32 v7, 2, v5')
    e('s_movk_i32 s25, 160'); e('v_mul_lo_u32 v8, v1, s25'); e('v_lshl_add_u32 v8, v2, 1, v8')
    e('s_mov_b32 s26, 0x3acccccd')
    e(f's_mov_b32 s36, {C["WS_ST1"]}'); e(f's_mov_b32 s37, {C["WS_ST1"]+8192}'); e(f's_mov_b32 s38, {C["WS_X1"]}'); e(f's_mov_b32 s39, {C["WS_H2"]}')
    for i in range(1):
        for j in range(7): e(f'v_mov_b32 v{16+j}, v{140+7*i+j}')
        for j in range(5):
            e(f'ds_read_u16 v{24+2*j}, v8 offset:{j*10240+2*i}'); e(f'ds_read_u16 v{25+2*j}, v8 offset:{j*10240+80+2*i}')
        e('s_waitcnt vmcnt(0) lgkmcnt(0)'); e('v_rcp_f32 v22, v22'); e('v_mov_b32 v9, 0')
        for k in range(10):
            j = k//2; x = f'v{110+k}'
            e(f'v_lshlrev_b32 {x}, 16, v{16+j}' if k % 2 == 0 else f'v_and_b32 {x}, 0xffff0000, v{16+j}')
            e(f'v_sub_f32 v34, {x}, v21'); rbf('v34', 'v34'); e('v_mul_f32 v34, v34, v22'); rbf('v34', 'v34')
            e(f'v_mul_f32 v34, v34, v{60+k}'); rbf('v34', 'v34'); e(f'v_add_f32 v34, v34, v{50+k}'); rbf('v34', 'v34')
            e(f'v_lshlrev_b32 v35, 16, v{40+j}' if k % 2 == 0 else f'v_and_b32 v35, 0xffff0000, v{40+j}')
            e('v_mul_f32 v34, v34, v35'); rbf('v34', 'v34'); e(f'v_lshlrev_b32 v35, 16, v{24+k}'); e('v_add_f32 v34, v34, v35'); rbf('v34', 'v34')
            e(f'v_mul_f32 v34, v34, v{70+k}'); rbf('v34', 'v34'); e(f'v_add_f32 {x}, {x}, v34'); rbf(x, x)
            e(f'v_add_f32 v9, v9, {x}')
        wave_sum('v9', 'v36')
        e('v_readlane_b32 s27, v9, 63'); e('s_nop 3'); e('v_mov_b32 v37, s27'); e('v_mul_f32 v37, s26, v37')
        e('v_mov_b32 v9, 0')
        for k in range(10): e(f'v_sub_f32 v34, v{110+k}, v37'); e('v_fmac_f32 v9, v34, v34')
        wave_sum('v9', 'v36')
        e('v_readlane_b32 s27, v9, 63'); e('s_nop 3'); e('v_mov_b32 v9, s27'); e('v_mul_f32 v9, s26, v9')
        rbf('v9', 'v9'); e('v_add_f32 v9, 0x3727c5ac, v9'); rbf('v9', 'v9'); e('v_sqrt_f32 v9, v9'); e('s_nop 0'); rbf('v9', 'v9'); e('v_rcp_f32 v9, v9')
        rbf('v37', 'v37')
        for k in range(10):
            e(f'v_sub_f32 v34, v{110+k}, v37'); rbf('v34', 'v34'); e('v_mul_f32 v34, v34, v9'); rbf('v34', 'v34')
            e(f'v_mul_f32 v34, v34, v{90+k}'); rbf('v34', 'v34'); e(f'v_add_f32 v{120+k}, v34, v{80+k}')
        for j in range(5):
            e(f'v_cvt_pk_bf16_f32 v34, v{110+2*j}, v{111+2*j}'); e(f'v_cvt_pk_bf16_f32 v35, v{120+2*j}, v{121+2*j}')
            e(f'buffer_store_dword v34, v6, s[20:23], s38 offen offset:{256*j}'); e(f'buffer_store_dword v35, v6, s[20:23], s39 offen offset:{256*j}')
        e('v_add_u32 v6, 1280, v6')
    e('s_endpgm')
```

```python
def emit(e, lab, srd, rbf, C):
    lab('K0_KG')
    for i, off in enumerate([8, 16, 24, 32, 40, 48]): e(f's_load_dwordx2 s[{4+2*i}:{5+2*i}], s[0:1], {off}')
    e('s_load_dwordx2 s[16:17], s[0:1], 56'); e('s_load_dwordx2 s[18:19], s[0:1], 136')
    e('s_waitcnt lgkmcnt(0)')
    srd(20, 18, C['WSZ']); srd(24, 16, 1280)
    e('s_sub_u32 s3, s2, 376')
    e('v_and_b32 v1, 127, v0'); e('v_lshrrev_b32 v2, 7, v0')
    e('s_lshl_b32 s40, s3, 8'); e('v_lshl_add_u32 v3, v1, 1, s40')
    for i in range(6):
        srd(28, 4+2*i, 163840); e(f'buffer_load_ushort v{10+i}, v3, s[28:31], 0 offen')
    e('s_lshl_b32 s41, s3, 1'); e('v_mov_b32 v4, s41'); e('buffer_load_ushort v16, v4, s[24:27], 0 offen')
    e('s_waitcnt vmcnt(0)')
    for i in range(7): e(f'v_lshlrev_b32 v{10+i}, 16, v{10+i}')
    e('s_mov_b32 s42, 0x3fb8aa3b'); e('s_mov_b32 s43, 0x3e22f983')
    e('v_mul_f32 v16, s42, v16'); e('v_exp_f32 v16, v16'); e('s_nop 0'); rbf('v16', 'v16')
    e('v_mul_f32 v10, v16, v10'); e('v_mul_f32 v11, v16, v11'); e('v_mul_f32 v12, v16, v12'); e('v_mul_f32 v13, v16, v13')
    e('v_mul_f32 v10, s42, v10'); e('v_mul_f32 v11, s43, v11')
    e('v_mul_f32 v17, v14, v12'); e('v_fma_f32 v17, -v15, v13, v17'); e('v_mul_f32 v18, v14, v13'); e('v_fma_f32 v18, v15, v12, v18')
    e('v_cmp_eq_u32 vcc, 1, v2'); e('s_mov_b64 s[44:45], vcc')
    def cexp(x, dr, di):
        e(f'v_mul_f32 v40, v10, {x}'); e(f'v_mul_f32 v41, v11, {x}'); e('v_exp_f32 v40, v40'); e('v_fract_f32 v41, v41')
        e('v_cos_f32 v42, v41'); e('v_sin_f32 v43, v41'); e('s_nop 0'); e(f'v_mul_f32 {dr}, v40, v42'); e(f'v_mul_f32 {di}, v40, v43')
    def cmul(ar, ai, br, bi):
        e(f'v_mul_f32 v44, {ar}, {br}'); e(f'v_mul_f32 v45, {ar}, {bi}'); e(f'v_fma_f32 v44, -{ai}, {bi}, v44'); e(f'v_fma_f32 v45, {ai}, {br}, v45')
        e(f'v_mov_b32 {ar}, v44'); e(f'v_mov_b32 {ai}, v45')
    e('s_movk_i32 s46, 136'); e('v_mul_lo_u32 v5, v1, s46'); e('s_movk_i32 s46, 17408'); e('v_mul_lo_u32 v8, v2, s46'); e('v_add_u32 v5, v5, v8')
    e('v_and_b32 v6, 63, v0'); e('v_lshrrev_b32 v7, 6, v0')
    e('v_lshlrev_b32 v9, 6, v7'); e('v_lshrrev_b32 v46, 4, v6'); e('v_add_u32 v9, v9, v46')
    e('s_movk_i32 s46, 68'); e('v_mul_lo_u32 v9, v9, s46'); e('v_and_b32 v46, 15, v6'); e('v_lshl_add_u32 v9, v46, 2, v9')
    e('v_lshlrev_b32 v56, 10, v7'); e('v_lshrrev_b32 v57, 4, v6'); e('v_lshl_add_u32 v56, v57, 8, v56'); e('v_and_b32 v57, 15, v6'); e('v_lshl_add_u32 v56, v57, 2, v56')
    e('v_lshlrev_b32 v59, 2, v0')
    import struct
    fl = lambda x: hex(struct.unpack('<I', struct.pack('<f', x))[0])
    for sgm in range(4):
        st = float(2**sgm); bs = [0., 256., 512., 1024.][sgm]
        e(f'v_mov_b32 v47, {fl(st)}'); e(f'v_mov_b32 v20, {fl(16*st)}'); e('v_cndmask_b32 v20, v20, v47, s[44:45]')
        e(f'v_mov_b32 v21, {fl(bs)}')
        cexp('v20', 'v24', 'v25'); cexp('v21', 'v28', 'v29')
        cmul('v28', 'v29', 'v17', 'v18')
        e('v_mov_b32 v47, 1.0'); e('v_cndmask_b32 v28, v28, v47, s[44:45]'); e('v_mov_b32 v47, 0'); e('v_cndmask_b32 v29, v29, v47, s[44:45]')
        e('v_mov_b32 v33, -1.0'); e('v_mov_b32 v47, 1.0'); e('v_cndmask_b32 v33, v33, v47, s[44:45]')
        if sgm: e('s_barrier')
        for i in range(16):
            e('v_mul_f32 v32, v33, v29')
            e(f'ds_write_b32 v5, v28 offset:{4*i}'); e(f'ds_write_b32 v5, v32 offset:{68+4*i}')
            if i < 15: cmul('v28', 'v29', 'v24', 'v25')
        e('s_waitcnt lgkmcnt(0)'); e('s_barrier')
        for r in range(4): e(f'v_mov_b32 v{48+r}, 0')
        for kk in range(16): e(f'ds_read_b32 v{64+2*kk}, v9 offset:{272*kk}'); e(f'ds_read_b32 v{65+2*kk}, v9 offset:{17408+272*kk}')
        for kk in range(16):
            e(f's_waitcnt lgkmcnt({min(15, 30-2*kk)})')
            e(f'v_mfma_f32_16x16x4_f32 v[48:51], v{64+2*kk}, v{65+2*kk}, v[48:51]')
        e('s_nop 15'); e('s_nop 3')
        for r in range(4): e(f'ds_write_b32 v56, v{48+r} offset:{34816+64*r}')
        e('s_waitcnt lgkmcnt(0)'); e('s_barrier')
        off = [0, 256, 384, 512][sgm]; lim = [256, 128, 128, 129][sgm]
        for w in range(4): e(f'ds_read_b32 v{60+w}, v59 offset:{34816+1024*w}')
        e('s_waitcnt lgkmcnt(0)'); e('v_add_f32 v60, v60, v61'); e('v_add_f32 v62, v62, v63'); e('v_add_f32 v60, v60, v62')
        e(f'v_cmp_gt_u32 vcc, {lim}, v0'); e('s_and_saveexec_b64 s[48:49], vcc')
        e(f'ds_write_b32 v59, v60 offset:{38912+4*off}'); e('s_mov_b64 exec, s[48:49]')
    e('s_waitcnt lgkmcnt(0)'); e('s_barrier')
    e(f's_mul_i32 s50, s3, {C["KREV_STRIDE"]}'); e(f's_add_u32 s50, s50, {C["WS_KREV"]}')
    for j in range(9):
        e(f'v_add_u32 v60, {256*j}, v0'); e('v_sub_u32 v61, 2047, v60')
        e('v_max_i32 v62, 0, v61'); e('v_cvt_f32_u32 v62, v62'); rbf('v62', 'v62'); e('v_cvt_u32_f32 v62, v62')
        e('v_mov_b32 v63, v62')
        for (lo, base, sh) in [(256, 256, 1), (512, 384, 2), (1024, 512, 3)]:
            e(f'v_subrev_u32 v64, {lo}, v62'); e(f'v_lshrrev_b32 v64, {sh}, v64'); e(f'v_add_u32 v64, {base}, v64')
            e(f'v_cmp_le_u32 vcc, {lo}, v62'); e('s_nop 1'); e('v_cndmask_b32 v63, v63, v64, vcc')
        e('v_lshlrev_b32 v63, 2, v63'); e(f'ds_read_b32 v{70+j}, v63 offset:38912')
    e('s_waitcnt lgkmcnt(0)')
    for j in range(9):
        e(f'v_add_u32 v60, {256*j}, v0'); e('v_sub_u32 v61, 2047, v60')
        e('v_cmp_gt_i32 vcc, 0, v61'); e('s_nop 1'); e(f'v_cndmask_b32 v64, v{70+j}, 0, vcc')
        e('v_cvt_pk_bf16_f32 v64, v64, v64'); e('v_lshlrev_b32 v65, 1, v60')
        e('v_cmp_gt_u32 vcc, 2096, v60'); e('s_and_saveexec_b64 s[48:49], vcc')
        e('buffer_store_short v64, v65, s[20:23], s50 offen'); e('s_mov_b64 exec, s[48:49]')
    e('s_endpgm')
```

```python
import sys
L = []
def e(s): L.append('    ' + s)
def lab(s): L.append(s + ':')
WS_MOD=0; WS_ST1=16384; WS_XT=0x10000; WS_KREV=0x300000; KREV_STRIDE=4192; WS_YT=0x600000; WS_X1=0x900000; WS_H2=0xC00000; WS_HID=0x1000000
WSZ=268435456
def srd(d, base, n):
    e(f's_mov_b32 s{d}, s{base}'); e(f's_and_b32 s{d+1}, s{base+1}, 0xffff'); e(f's_mov_b32 s{d+2}, {n}'); e(f's_mov_b32 s{d+3}, 0x20000')
def rbf(dst, src):
    e(f'v_cvt_pk_bf16_f32 {dst}, {src}, {src}'); e(f'v_lshlrev_b32 {dst}, 16, {dst}')
def wave_sum(v, t):
    for ctl in ['row_shr:1 row_mask:0xf', 'row_shr:2 row_mask:0xf', 'row_shr:4 row_mask:0xf', 'row_shr:8 row_mask:0xf', 'row_bcast:15 row_mask:0xa', 'row_bcast:31 row_mask:0xc']:
        e(f'v_mov_b32 {t}, 0'); e('s_nop 1')
        e(f'v_mov_b32_dpp {t}, {v} {ctl} bank_mask:0xf')
        e(f'v_add_f32 {v}, {v}, {t}')
        e('s_nop 1')
kernels = []

def k0():
    kernels.append(('k0_kernel', 1016, 256, 51712, 128, 64))
    lab('k0_kernel')
    e('s_cmp_lt_u32 s2, 1016'); e('s_cbranch_scc1 K0_IN'); e('s_endpgm'); lab('K0_IN')
    e('s_add_u32 s3, s2, 376'); e('s_sub_u32 s4, s2, 640'); e('s_cmp_lt_u32 s2, 640'); e('s_cselect_b32 s2, s3, s4')
    e('s_cmp_lt_u32 s2, 120'); e('s_cbranch_scc1 K0_MOD')
    e('s_cmp_lt_u32 s2, 376'); e('s_cbranch_scc1 K0_ST')
    e('s_cmp_lt_u32 s2, 1016'); e('s_cbranch_scc1 K0_KG')
    e('s_endpgm')
    lab('K0_MOD')
    e('s_load_dwordx2 s[4:5], s[0:1], 104'); e('s_load_dwordx2 s[6:7], s[0:1], 112'); e('s_load_dwordx2 s[8:9], s[0:1], 136')
    e('s_waitcnt lgkmcnt(0)')
    srd(12, 4, 1280); srd(16, 6, 4915200); srd(20, 8, WSZ)
    e('v_lshlrev_b32 v1, 1, v0')
    for j in range(3): e(f'buffer_load_ushort v{2+j}, v1, s[12:15], 0 offen offset:{512*j}')
    e('s_mov_b32 s24, 0xbfb8aa3b')
    e('v_lshlrev_b32 v8, 2, v0')
    e('s_waitcnt vmcnt(0)')
    for j in range(3):
        x=f'v{2+j}'
        e(f'v_lshlrev_b32 {x}, 16, {x}'); e(f'v_mul_f32 v5, s24, {x}'); e('v_exp_f32 v5, v5'); e('s_nop 0')
        e('v_add_f32 v5, 1.0, v5'); e('v_rcp_f32 v5, v5'); e('s_nop 0'); e(f'v_mul_f32 v5, v5, {x}')
        rbf('v5', 'v5'); e(f'ds_write_b32 v8, v5 offset:{1024*j}')
    e('v_and_b32 v6, 15, v0'); e('v_lshrrev_b32 v7, 4, v0')
    e('s_mov_b32 s25, 7680'); e('v_mul_lo_u32 v9, v7, s25'); e('s_lshl_b32 s26, s2, 6')
    e('v_lshl_add_u32 v9, v6, 2, v9'); e('v_add_u32 v9, s26, v9')
    e('s_mov_b32 s27, 122880')
    for s in range(40):
        e(f'buffer_load_dword v{16+s}, v9, s[16:19], 0 offen')
        if s < 39: e('v_add_u32 v9, s27, v9')
    e('s_waitcnt lgkmcnt(0)'); e('s_barrier')
    e('v_lshlrev_b32 v10, 2, v7')
    for s in range(40): e(f'ds_read_b32 v{60+s}, v10 offset:{64*s}')
    e('v_mov_b32 v12, 0'); e('v_mov_b32 v13, 0')
    e('s_waitcnt vmcnt(0) lgkmcnt(0)')
    for s in range(40):
        e(f'v_lshlrev_b32 v14, 16, v{16+s}'); e(f'v_and_b32 v15, 0xffff0000, v{16+s}')
        e(f'v_fmac_f32 v12, v{60+s}, v14'); e(f'v_fmac_f32 v13, v{60+s}, v15')
    e('v_lshlrev_b32 v10, 7, v7'); e('v_lshl_add_u32 v10, v6, 3, v10')
    e('ds_write_b64 v10, v[12:13] offset:4096')
    e('s_waitcnt lgkmcnt(0)'); e('s_barrier')
    e('v_cmp_gt_u32 vcc, 32, v0'); e('s_and_saveexec_b64 s[28:29], vcc'); e('s_cbranch_execz K0_MOD_END')
    e('v_lshlrev_b32 v10, 2, v0')
    for r in range(16): e(f'ds_read_b32 v{16+r}, v10 offset:{4096+128*r}')
    e('s_waitcnt lgkmcnt(0)')
    for r in range(1, 16): e(f'v_add_f32 v16, v16, v{16+r}')
    rbf('v16', 'v16')
    e('s_lshl_b32 s26, s2, 7'); e('v_add_u32 v10, s26, v10')
    e(f'buffer_store_dword v16, v10, s[20:23], 0 offen offset:{WS_MOD}')
    lab('K0_MOD_END'); e('s_endpgm')
    lab('K0_ST')
    e('s_load_dwordx2 s[4:5], s[0:1], 0'); e('s_load_dwordx2 s[8:9], s[0:1], 136')
    e('s_waitcnt lgkmcnt(0)')
    srd(12, 4, 2621440); srd(20, 8, WSZ)
    e('s_sub_u32 s3, s2, 120'); e('s_lshl_b32 s24, s3, 3')
    e('v_and_b32 v1, 63, v0'); e('v_lshrrev_b32 v2, 6, v0')
    e('v_lshl_add_u32 v3, v2, 1, s24'); e('s_movk_i32 s25, 1280'); e('v_mul_lo_u32 v3, v3, s25'); e('v_lshl_add_u32 v3, v1, 2, v3')
    for i in range(2):
        for j in range(5): e(f'buffer_load_dword v{16+i*5+j}, v3, s[12:15], 0 offen offset:{256*j}')
        e('v_add_u32 v3, 1280, v3')
    e('s_waitcnt vmcnt(0)')
    e('s_mov_b32 s26, 0x3acccccd')
    for i in range(2):
        r0 = 16+i*5
        e('v_mov_b32 v5, 0')
        for j in range(5):
            e(f'v_lshlrev_b32 v6, 16, v{r0+j}'); e(f'v_and_b32 v7, 0xffff0000, v{r0+j}'); e('v_add_f32 v5, v5, v6'); e('v_add_f32 v5, v5, v7')
        wave_sum('v5', 'v8')
        e('v_readlane_b32 s27, v5, 63'); e('s_nop 3'); e('v_mov_b32 v9, s27'); e('v_mul_f32 v9, s26, v9')
        e('v_mov_b32 v5, 0')
        for j in range(5):
            e(f'v_lshlrev_b32 v6, 16, v{r0+j}'); e(f'v_and_b32 v7, 0xffff0000, v{r0+j}'); e('v_sub_f32 v6, v6, v9'); e('v_sub_f32 v7, v7, v9')
            e('v_fmac_f32 v5, v6, v6'); e('v_fmac_f32 v5, v7, v7')
        wave_sum('v5', 'v8')
        e('v_readlane_b32 s27, v5, 63'); e('s_nop 3'); e('v_mov_b32 v5, s27'); e('v_mul_f32 v5, s26, v5')
        rbf('v5', 'v5'); e('v_add_f32 v5, 0x3727c5ac, v5'); rbf('v5', 'v5'); e('v_sqrt_f32 v5, v5'); e('s_nop 0'); rbf('v5', 'v5')
        rbf('v9', 'v9')
        e('v_lshl_add_u32 v10, v2, 1, s24'); e(f'v_add_u32 v10, {i}, v10'); e('v_lshlrev_b32 v10, 2, v10')
        e('v_cmp_eq_u32 vcc, 0, v1'); e('s_and_saveexec_b64 s[28:29], vcc')
        e(f'buffer_store_dword v9, v10, s[20:23], 0 offen offset:0 ' .replace('offset:0', '') + '')
        L[-1] = f'    buffer_store_dword v9, v10, s[20:23], s30 offen'
        L.insert(len(L)-1, f'    s_mov_b32 s30, {WS_ST1}')
        e(f's_mov_b32 s30, {WS_ST1+8192}'); e('buffer_store_dword v5, v10, s[20:23], s30 offen')
        e('s_mov_b64 exec, s[28:29]')
    e('v_lshlrev_b32 v11, 2, v2')
    e('s_movk_i32 s25, 160'); e('v_mul_lo_u32 v12, v1, s25'); e('v_add_u32 v11, v11, v12')
    for p in range(1):
        for j in range(5):
            a=16+(2*p)*5+j; b=16+(2*p+1)*5+j
            e(f'v_perm_b32 v13, v{b}, v{a}, s31') if False else None
            e(f'v_and_b32 v13, 0xffff, v{a}'); e(f'v_lshl_or_b32 v13, v{b}, 16, v13')
            e(f'v_lshrrev_b32 v14, 16, v{a}'); e(f'v_and_or_b32 v14, v{b}, s33, v14')
            e(f'ds_write_b32 v11, v13 offset:{j*10240+4*p}'); e(f'ds_write_b32 v11, v14 offset:{j*10240+80+4*p}')
    idx = [i for i,s in enumerate(L) if 'v_lshlrev_b32 v11, 2, v2' in s][-1]
    L.insert(idx, '    s_mov_b32 s33, 0xffff0000')
    e('s_waitcnt lgkmcnt(0)'); e('s_barrier')
    e('s_movk_i32 s25, 80'); e('v_mul_lo_u32 v11, v0, s25')
    e('s_movk_i32 s25, 4224'); e('v_mul_lo_u32 v12, v0, s25'); e('s_lshl_b32 s27, s24, 1'); e(f's_add_u32 s27, s27, {WS_XT}'); e('v_add_u32 v12, s27, v12')
    for q in range(3):
        if q == 2:
            e('v_cmp_gt_u32 vcc, 128, v0'); e('s_and_saveexec_b64 s[28:29], vcc'); e('s_cbranch_execz K0_ST_END')
        for z in range(1): e(f'ds_read_b128 v[{16+4*z}:{19+4*z}], v11 offset:{20480*q+16*z}')
        e('s_waitcnt lgkmcnt(0)')
        for z in range(1): e(f'buffer_store_dwordx4 v[{16+4*z}:{19+4*z}], v12, s[20:23], 0 offen offset:{16*z}')
        e('v_add_u32 v12, 0x108000, v12'); e('s_nop 1')
    lab('K0_ST_END'); e('s_endpgm')
    import kgen; kgen.emit(e, lab, srd, rbf, dict(WSZ=WSZ, WS_KREV=WS_KREV, KREV_STRIDE=KREV_STRIDE))

def finish(path):
    hdr = ''
    for (n, g, b, lds, vg, sg) in kernels: hdr += f'; @launch kernel={n} grid=({g},1,1) block=({b},1,1) lds={lds}\n'
    s = hdr + '.amdgcn_target "amdgcn-amd-amdhsa--gfx950"\n.text\n'
    body = '\n'.join(L)
    for (n, *_ ) in kernels:
        body = body.replace(f'{n}:', f'.globl {n}\n.p2align 8\n.type {n},@function\n{n}:')
    s += body + '\n.section .rodata,"a"\n'
    for (n, g, b, lds, vg, sg) in kernels:
        s += f'.p2align 6\n.amdhsa_kernel {n}\n  .amdhsa_next_free_vgpr {vg}\n  .amdhsa_next_free_sgpr {sg}\n  .amdhsa_accum_offset {vg}\n  .amdhsa_group_segment_fixed_size 0\n  .amdhsa_kernarg_size 144\n  .amdhsa_user_sgpr_count 2\n  .amdhsa_user_sgpr_kernarg_segment_ptr 1\n  .amdhsa_system_sgpr_workgroup_id_x 1\n.end_amdhsa_kernel\n'
    open(path, 'w').write(s)

if __name__ == '__main__':
    k0()
    import conv; conv.emit(e, lab, srd, rbf, dict(WSZ=WSZ, WS_KREV=WS_KREV, KREV_STRIDE=KREV_STRIDE, WS_XT=WS_XT, WS_ST1=WS_ST1, WS_YT=WS_YT), kernels)
    import k3; k3.emit(e, lab, srd, rbf, wave_sum, dict(WSZ=WSZ, WS_ST1=WS_ST1, WS_YT=WS_YT, WS_X1=WS_X1, WS_H2=WS_H2), kernels)
    import gemm
    for w in (1, 2): gemm.emit(e, lab, srd, rbf, dict(WSZ=WSZ, WS_X1=WS_X1, WS_H2=WS_H2, WS_HID=WS_HID), kernels, w)
    finish(sys.argv[1] if len(sys.argv) > 1 else 't.s')
```
